```python
import torch

def _softmax(x, axis=-1):
    return torch.softmax(x, dim=axis)
def _gelu(x):
    return torch.nn.functional.gelu(x, approximate="tanh")
def _silu(x):
    return torch.nn.functional.silu(x)
def _sigmoid(x):
    return torch.sigmoid(x)
def _layernorm(x, axis=-1, eps=1e-5):
    m = x.mean(dim=axis, keepdim=True)
    v = x.var(dim=axis, keepdim=True, unbiased=False)
    return (x - m) / torch.sqrt(v + eps)
def _scatter_add(tgt, idx, src, axis=0):
    return tgt.clone().index_add_(axis, idx, src)
def _segment_sum(src, seg, n):
    out = torch.zeros((n,) + src.shape[1:], dtype=src.dtype)
    return out.index_add_(0, seg, src)
def _pad(x, pw):
    flat = tuple(v for pair in reversed(pw) for v in pair)
    return torch.nn.functional.pad(x, flat)

kernel_name = 'sequential_preLN__softmax_full_mha__mixer_s_mlp__prompt'

def setup_inputs():

    _w = (lambda a: (lambda t: t.to(torch.bfloat16) if t.is_floating_point() else t)(torch.as_tensor(a)))
    def _A_setup():
        B, S, D = 1, 2048, 640
        return {
            "x": _w((lambda *s: torch.randn(*s, dtype=torch.bfloat16) * 0.05)(B, S, D)),
            "wqkv": _w((lambda *s: torch.randn(*s, dtype=torch.bfloat16) * 0.05)(D, 3 * D)),
            "wo": _w((lambda *s: torch.randn(*s, dtype=torch.bfloat16) * 0.05)(D, D)),
        }
    _A_in = _A_setup()

    def _B_setup():
        B, S, D, F = 1, 2048, 640, 1536
        return {
            "x":  _w((lambda *s: torch.randn(*s, dtype=torch.bfloat16) * 0.05)(B, S, D)),
            "w1": _w((lambda *s: torch.randn(*s, dtype=torch.bfloat16) * 3.2)(D, D) * (D ** -0.5)),
            "w2": _w((lambda *s: torch.randn(*s, dtype=torch.bfloat16) * 3.2)(D, D) * (D ** -0.5)),
            "w3": _w((lambda *s: torch.randn(*s, dtype=torch.bfloat16) * 3.2)(D, F) * (D ** -0.5)),
            "w4": _w((lambda *s: torch.randn(*s, dtype=torch.bfloat16) * 3.2)(F, D) * (F ** -0.5)),
        }
    _B_in = _B_setup()

    return {
        "A_x": _A_in["x"],
        "A_wqkv": _A_in["wqkv"],
        "A_wo": _A_in["wo"],
        "B_x": _B_in["x"],
        "B_w1": _B_in["w1"],
        "B_w2": _B_in["w2"],
        "B_w3": _B_in["w3"],
        "B_w4": _B_in["w4"],
    }

def reference(A_x, A_wqkv, A_wo, B_x, B_w1, B_w2, B_w3, B_w4):
    def _A_ref(x, wqkv, wo):
        B, S, D = x.shape
        H = 32; Dh = D // H
        qkv = (lambda x, *d: x.permute(*d))((x @ wqkv).reshape(B, S, 3, H, Dh), 2, 0, 3, 1, 4)
        q, k, v = qkv[0], qkv[1], qkv[2]
        scale = Dh ** -0.5
        scores = torch.einsum("bhqd,bhkd->bhqk", q, k) * scale
        p = _softmax(scores, axis=-1)
        o = torch.einsum("bhqk,bhkd->bhqd", p, v)
        return (lambda x, *d: x.permute(*d))(o, 0, 2, 1, 3).reshape(B, S, D) @ wo

    def _B_ref(x, w1, w2, w3, w4):
        B, S, D = x.shape
        h = _gelu(_layernorm(x, axis=-1) @ w1)
        c = D // 4
        g0 = _pad(h[:, :, 0*c:1*c], ((0, 0), (1, 0), (0, 0)))[:, :S, :]
        g1 = _pad(h[:, :, 1*c:2*c], ((0, 0), (0, 1), (0, 0)))[:, 1:, :]
        g2 = _pad(h[:, :, 2*c:3*c], ((0, 0), (2, 0), (0, 0)))[:, :S, :]
        g3 = _pad(h[:, :, 3*c:   ], ((0, 0), (0, 2), (0, 0)))[:, 2:, :]
        hs = torch.concatenate([g0, g1, g2, g3], axis=-1) @ w2
        x1 = x + hs
        h2 = _gelu(_layernorm(x1, axis=-1) @ w3) @ w4
        return x1 + h2

    x = A_x
    h = x + _A_ref(_layernorm(x, axis=-1), A_wqkv, A_wo)
    h2 = h + _B_ref(_layernorm(h, axis=-1), B_w1, B_w2, B_w3, B_w4)
    return h2
```

```python
class Kern:
    def __init__(self, name, grid, block, lds):
        self.name, self.grid, self.block, self.lds = name, grid, block, lds
        self.lines = []
        self.nv = 0
        self.na = 0
        self.ns = 0
        self.lab = 0
    def e(self, s):
        self.lines.append("    " + s)
    def c(self, s):
        self.lines.append("    ; " + s)
    def label(self, l):
        self.lines.append(f"{l}:")
    def newlabel(self, base):
        self.lab += 1
        return f"L_{self.name}_{base}{self.lab}"
    STAMP_S0 = 64
    def stamp(self, i):
        if not getattr(Kern, "PROFILE", False): return
        self.e(f"s_memtime s[{self.STAMP_S0+2*i}:{self.STAMP_S0+2*i+1}]")
        self.ns = max(self.ns, 100)
    def rstamp(self, i):
        if not getattr(Kern, "PROFILE", False): return
        self.e(f"s_memrealtime s[{self.STAMP_S0+2*i}:{self.STAMP_S0+2*i+1}]")
    def dump_stamps(self, n, kidx, wave_sreg, wsptr, nwaves):
        if not getattr(Kern, "PROFILE", False): return
        PROF_OFF = 0x8000000
        e = self.e
        e("s_waitcnt vmcnt(0) lgkmcnt(0)")
        e(f"s_memrealtime s[{self.STAMP_S0+2*n}:{self.STAMP_S0+2*n+1}]")
        e("s_waitcnt lgkmcnt(0)")
        e(f"s_add_u32 s96, s{wsptr}, {PROF_OFF}")
        e(f"s_addc_u32 s97, s{wsptr+1}, 0")
        e("s_mov_b32 s98, 0x1000000")
        e("s_mov_b32 s99, 0x20000")
        e(f"s_add_u32 s95, s2, {kidx*512}")
        e("s_lshl_b32 s95, s95, 4")
        e(f"s_add_u32 s95, s95, s{wave_sreg}")
        e("s_lshl_b32 s95, s95, 6")
        e("s_mov_b64 exec, 1")
        e("v_mov_b32 v0, 0")
        for i in range(n+1):
            e(f"v_mov_b32 v1, s{self.STAMP_S0+2*i}")
            e(f"buffer_store_dword v1, v0, s[96:99], s95 offen offset:{4*i}")
        e("s_getreg_b32 s94, hwreg(HW_REG_XCC_ID)")
        e("v_mov_b32 v1, s94")
        e(f"buffer_store_dword v1, v0, s[96:99], s95 offen offset:60")
    def raw(self, s):
        self.lines.append(s)
    def text(self):
        hdr = [f".globl {self.name}_kernel", ".p2align 8", f".type {self.name}_kernel,@function", f"{self.name}_kernel:"]
        return "\n".join(hdr + self.lines) + "\n"
    def desc(self):
        acc = (max(self.nv, 4) + 3) // 4 * 4
        nfv = acc + self.na if self.na else self.nv
        return f""".p2align 6
.amdhsa_kernel {self.name}_kernel
  .amdhsa_next_free_vgpr {nfv}
  .amdhsa_next_free_sgpr {self.ns}
  .amdhsa_accum_offset {acc}
  .amdhsa_group_segment_fixed_size 0
  .amdhsa_kernarg_size 88
  .amdhsa_user_sgpr_count 2
  .amdhsa_user_sgpr_kernarg_segment_ptr 1
  .amdhsa_system_sgpr_workgroup_id_x 1
.end_amdhsa_kernel
"""
    def launch(self):
        return f"; @launch kernel={self.name}_kernel grid=({self.grid},1,1) block=({self.block},1,1) lds={self.lds}"

class VAlloc:
    def __init__(self, start=1):
        self.n = start
    def get(self, cnt=1, align=1):
        if cnt >= 2 and align < 2: align = 2
        self.n = (self.n + align - 1) // align * align
        r = self.n
        self.n += cnt
        return r

def vr(b, n=1):
    return f"v{b}" if n == 1 else f"v[{b}:{b+n-1}]"
def sr(b, n=1):
    return f"s{b}" if n == 1 else f"s[{b}:{b+n-1}]"

def f32hex(x):
    import struct
    return "0x%08x" % struct.unpack("<I", struct.pack("<f", x))[0]

def assemble_file(kernels, header_comment=""):
    out = []
    if header_comment:
        out += ["; " + l for l in header_comment.strip().split("\n")]
    out += [k.launch() for k in kernels]
    out.append('.amdgcn_target "amdgcn-amd-amdhsa--gfx950"')
    out.append(".text")
    seen = set()
    for k in kernels:
        if k.name in seen: continue
        seen.add(k.name)
        out.append(k.text())
    out.append('.section .rodata,"a"')
    seen = set()
    for k in kernels:
        if k.name in seen: continue
        seen.add(k.name)
        out.append(k.desc())
    return "\n".join(out)
```

```python
S, D, F, H, DH = 2048, 640, 1536, 32, 20
ACT = S * D * 2
WS_Q = 0
WS_KV = ACT
WS_O = 3 * ACT
WS_H = 4 * ACT
WS_G = 5 * ACT
WS_X1 = 6 * ACT
WS_U = 7 * ACT
WS_WP = WS_U + S * F * 2
WP_WO = WS_WP
WP_W1 = WP_WO + D * D * 2
WP_W2 = WP_W1 + D * D * 2
WP_W3 = WP_W2 + D * D * 2
WP_W4 = WP_W3 + D * F * 2
WS_ST1 = WP_W4 + D * F * 2
WS_ST2 = WS_ST1 + S * 64
WS_CSP = WS_ST2 + S * 64
WS_CS = WS_CSP + 20 * 2176 * 4
WS_END = WS_CS + 2176 * 4
EPS = 1e-5
import math
QSCALE = (DH ** -0.5) * math.log2(math.e)
KA = dict(x=0, wqkv=8, wo=16, bx=24, w1=32, w2=40, w3=48, w4=56, out=64, dbg=72, ws=80)
```

```python
from asmlib import *
from layout import *

class VM:
    def __init__(self): self.ops = []
    def issue(self, tag): self.ops.append(tag)
    def need(self, pred):
        last = -1
        for i, t in enumerate(self.ops):
            if pred(t): last = i
        assert last >= 0
        return len(self.ops) - 1 - last

def srd(k, d, base, nbytes, off=0):
    if off:
        k.e(f"s_add_u32 s{d}, s{base}, {off}")
        k.e(f"s_addc_u32 s{d+1}, s{base+1}, 0")
    else:
        k.e(f"s_mov_b32 s{d}, s{base}")
        k.e(f"s_mov_b32 s{d+1}, s{base+1}")
    k.e(f"s_mov_b32 s{d+2}, {nbytes}")
    k.e(f"s_mov_b32 s{d+3}, 0x20000")

def reduce_g(k, regs, tmp):
    for r, t in zip(regs, tmp): k.e(f"v_mov_b32 v{t}, v{r}")
    k.e("s_nop 1")
    for r, t in zip(regs, tmp): k.e(f"v_permlane16_swap_b32 v{r}, v{t}")
    k.e("s_nop 1")
    for r, t in zip(regs, tmp): k.e(f"v_add_f32 v{r}, v{r}, v{t}")
    for r, t in zip(regs, tmp): k.e(f"v_mov_b32 v{t}, v{r}")
    k.e("s_nop 1")
    for r, t in zip(regs, tmp): k.e(f"v_permlane32_swap_b32 v{r}, v{t}")
    k.e("s_nop 1")
    for r, t in zip(regs, tmp): k.e(f"v_add_f32 v{r}, v{r}, v{t}")

import os
EXP = os.environ.get('EXP','')
def gen_p1(LA=6):
    k = Kern("p1", 240, 256, 163840)
    e = k.e
    KS = 20; NCH = 10; R = 5; DEPTH = 3
    va = VAlloc(1)
    vlane = va.get(); vg = va.get(); vn = va.get()
    vxoff = va.get()
    vwoff = va.get()
    vones = va.get()
    vtr = [[va.get() for _ in range(8)] for _ in range(3)]
    vxr = [[[va.get() for _ in range(2)] for _ in range(2)] for _ in range(3)]
    vst = [[va.get() for _ in range(8)] for _ in range(2)]
    sx = [va.get(), va.get()]; sq = [va.get(), va.get()]; cs = [va.get(), va.get()]
    t = [va.get() for _ in range(8)]
    acc = va.get(64, 4)
    wf = va.get(32, 4)
    xr = va.get(2 * 8, 4)
    k.nv = va.n; k.ns = 48
    assert k.nv <= 256
    ACC = lambda rt, i: acc + (i * 2 + rt) * 4
    XR = lambda ks, rt: xr + ((ks % 2) * 2 + rt) * 4
    WF = lambda f: wf + (f % 8) * 4

    e("s_cmp_ge_u32 s2, 240")
    e("s_cbranch_scc1 L_p1_end")
    k.rstamp(0); k.stamp(1)
    e("s_load_dwordx4 s[4:7], s[0:1], 0")
    e(f"s_load_dwordx2 s[8:9], s[0:1], {KA['ws']}")
    e("s_and_b32 s27, s2, 7")
    e("s_lshr_b32 s28, s2, 3")
    e("s_and_b32 s29, s27, 1")
    e("s_mul_i32 s29, s29, 30")
    e("s_add_u32 s28, s28, s29")
    e("s_lshr_b32 s25, s28, 2")
    e("s_and_b32 s28, s28, 3")
    e("s_lshr_b32 s27, s27, 1")
    e("s_lshl_b32 s27, s27, 2")
    e("s_add_u32 s24, s27, s28")
    e(f"v_lshrrev_b32 v{t[0]}, 6, v0")
    e(f"v_and_b32 v{vlane}, 63, v0")
    e(f"v_readfirstlane_b32 s26, v{t[0]}")
    e(f"v_lshrrev_b32 v{vg}, 4, v{vlane}")
    e(f"v_and_b32 v{vn}, 15, v{vlane}")
    e("s_lshl_b32 s27, s24, 7")
    e("s_lshl_b32 s28, s26, 5")
    e("s_add_u32 s30, s27, s28")
    e(f"v_lshrrev_b32 v{t[0]}, 3, v{vlane}")
    e(f"v_add_u32 v{t[0]}, s30, v{t[0]}")
    e(f"v_mul_u32_u24 v{t[0]}, 1280, v{t[0]}")
    e(f"v_and_b32 v{t[1]}, 7, v{vlane}")
    e(f"v_xor_b32 v{t[1]}, v{t[1]}, v{vg}")
    e(f"v_lshl_add_u32 v{vxoff}, v{t[1]}, 4, v{t[0]}")
    e(f"v_xor_b32 v{t[7]}, 64, v{vxoff}")
    e("s_and_b32 s27, s26, 1")
    e("s_lshl_b32 s27, s27, 3")
    e(f"v_lshlrev_b32 v{t[0]}, 1, v{vg}")
    e(f"v_or_b32 v{t[0]}, s27, v{t[0]}")
    e(f"v_xor_b32 v{t[0]}, v{t[0]}, v{vn}")
    e(f"v_lshlrev_b32 v{t[0]}, 4, v{t[0]}")
    e("s_lshl_b32 s27, s26, 3")
    e(f"v_add_u32 v{t[1]}, s27, v{vg}")
    e(f"v_mul_u32_u24 v{t[1]}, 3840, v{t[1]}")
    e("s_lshl_b32 s27, s25, 8")
    e(f"v_add3_u32 v{vwoff}, v{t[0]}, v{t[1]}, s27")
    e("s_lshl_b32 s31, s26, 11")
    e("s_lshl_b32 s39, s26, 12")
    e("s_waitcnt lgkmcnt(0)")
    srd(k, 12, 4, S * D * 2)
    srd(k, 16, 6, D * 3 * D * 2)
    srd(k, 20, 8, 3 * ACT)
    vxo = [vxoff, t[7]]
    vm = VM()
    def loads(c):
        ops = []
        slot = (c % R) * 32768
        for j in range(4):
            ops.append([f"s_add_u32 m0, s39, {slot + 16384 + j*1024}",
                        f"s_mov_b32 s32, {8*j*1280 + c*128}",
                        f"buffer_load_dwordx4 v{vxo[j&1]}, s[12:15], s32 offen lds", ("x", c)])
            kk, ee = j >> 1, j & 1
            ops.append([f"s_add_u32 m0, s31, {slot + kk*8192 + ee*1024}",
                        f"s_mov_b32 s32, {(64*c + 32*kk + 4*ee)*3840}",
                        f"buffer_load_dwordx4 v{vwoff}, s[16:19], s32 offen lds", ("w", c)])
        return ops
    def emit_load(op, vm):
        for s in op[:-1]: e(s)
        vm.issue(op[-1])
    for c in range(DEPTH):
        for op in loads(c): emit_load(op, vm)
    k.stamp(2)
    e(f"v_mov_b32 v{vones}, 0x3f803f80")
    for r in sx + sq + cs: e(f"v_mov_b32 v{r}, 0")
    e(f"v_lshrrev_b32 v{t[0]}, 2, v{vn}")
    e(f"v_and_b32 v{t[1]}, 1, v{vg}")
    e(f"v_lshl_or_b32 v{t[1]}, v{t[1]}, 2, v{t[0]}")
    e("s_lshl_b32 s27, s26, 1")
    e(f"v_xor_b32 v{t[1]}, s27, v{t[1]}")
    e(f"v_lshlrev_b32 v{t[1]}, 5, v{t[1]}")
    e(f"v_lshl_add_u32 v{t[0]}, v{vg}, 3, v{t[0]}")
    e(f"v_lshl_add_u32 v{t[1]}, v{t[0]}, 8, v{t[1]}")
    e(f"v_and_b32 v{t[0]}, 3, v{vn}")
    e(f"v_lshl_add_u32 v{vtr[0][0]}, v{t[0]}, 3, v{t[1]}")
    for i in range(1, 8): e(f"v_xor_b32 v{vtr[0][i]}, {i*32}, v{vtr[0][0]}")
    for sg in (1, 2):
        for i in range(8): e(f"v_add_u32 v{vtr[sg][i]}, {sg*65536}, v{vtr[0][i]}")
    e("s_mul_i32 s33, s25, 52")
    e("s_lshr_b32 s33, s33, 8")
    e("s_mul_i32 s34, s33, 5")
    e("s_sub_u32 s34, s25, s34")
    e("s_cmp_eq_u32 s33, 2")
    e("s_cbranch_scc1 L_p1_vpath")

    def x_addr(rowregs):
        for rt in range(2):
            r = rowregs[rt]
            e(f"v_bfe_u32 v{t[2]}, v{r}, 1, 3")
            e(f"v_xor_b32 v{t[2]}, v{t[2]}, v{vg}")
            e(f"v_lshlrev_b32 v{t[2]}, 4, v{t[2]}")
            e(f"v_lshl_add_u32 v{t[2]}, v{r}, 7, v{t[2]}")
            e(f"v_add_u32 v{vxr[0][rt][0]}, s39, v{t[2]}")
            e(f"v_xor_b32 v{vxr[0][rt][1]}, 64, v{vxr[0][rt][0]}")
            for sg in (1, 2):
                for kk in range(2):
                    e(f"v_add_u32 v{vxr[sg][rt][kk]}, {sg*65536}, v{vxr[0][rt][kk]}")

    def main_loop(vpath, vm):
        nfr = KS * 8
        lg = VM()
        def tr_read(f):
            ks, i = divmod(f, 8)
            c, kk = divmod(ks, 2)
            if kk == 0 and i == 0:
                assert any(tg == ("w", c) for tg in vm.ops)
                n = vm.need(lambda tg: tg[1] <= c)
                e(f"s_waitcnt vmcnt({n})")
                e("s_barrier")
                if ks == 0: k.stamp(3)
                if ks == 4: k.stamp(4)
                if ks == 10: k.stamp(5)
                if ks == 18: k.stamp(6)
            base = (c % R) * 32768
            if i == 0:
                for rt in range(2):
                    sg, off = divmod(base + 16384, 65536)
                    e(f"ds_read_b128 {vr(XR(ks,rt),4)}, v{vxr[sg][rt][kk]} offset:{off}")
                    lg.issue(("f", f))
            sg, off = divmod(base + kk * 8192, 65536)
            if 'notr' in EXP:
                e(f"ds_read_b64 {vr(WF(f),2)}, v{vlane} offset:{off}")
                e(f"ds_read_b64 {vr(WF(f)+2,2)}, v{vlane} offset:{off+1024}")
            else:
                e(f"ds_read_b64_tr_b16 {vr(WF(f),2)}, v{vtr[sg][i]} offset:{off}")
                e(f"ds_read_b64_tr_b16 {vr(WF(f)+2,2)}, v{vtr[sg][i]} offset:{off+1024}")
            lg.issue(("f", f)); lg.issue(("f", f))
        for f in range(LA): tr_read(f)
        for f in range(nfr):
            ks, i = divmod(f, 8)
            c, kk = divmod(ks, 2)
            n = lg.need(lambda tg: tg[1] <= f)
            assert n <= 15
            e(f"s_waitcnt lgkmcnt({n})")
            for rt in range(2):
                cc = "0" if ks == 0 else vr(ACC(rt, i), 4)
                a, b = (vr(XR(ks, rt), 4), vr(WF(f), 4)) if vpath else (vr(WF(f), 4), vr(XR(ks, rt), 4))
                e(f"v_mfma_f32_16x16x32_bf16 {vr(ACC(rt,i),4)}, {a}, {b}, {cc}")
            if i == 1 and 'nodot' not in EXP:
                for j in range(4):
                    for rt in range(2):
                        xreg = XR(ks, rt) + j
                        e(f"v_dot2_f32_bf16 v{sx[rt]}, v{xreg}, v{vones}, v{sx[rt]}")
                        e(f"v_dot2_f32_bf16 v{sq[rt]}, v{xreg}, v{xreg}, v{sq[rt]}")
                        e(f"v_dot2_f32_bf16 v{cs[rt]}, v{WF(f-1+rt)+j}, v{vones}, v{cs[rt]}")
            fi = kk * 8 + i
            if c + DEPTH < NCH and fi < 8:
                emit_load(loads(c + DEPTH)[fi], vm)
            if f + LA < nfr: tr_read(f + LA)

    def stats_common():
        k.stamp(7)
        e("s_nop 2")
        reduce_g(k, sx + sq + cs, t[:6])
        for rt in range(2):
            e(f"v_mul_f32 v{sx[rt]}, {f32hex(1.0/D)}, v{sx[rt]}")
            e(f"v_mul_f32 v{sq[rt]}, {f32hex(1.0/D)}, v{sq[rt]}")
            e(f"v_fma_f32 v{sq[rt]}, -v{sx[rt]}, v{sx[rt]}, v{sq[rt]}")
            e(f"v_max_f32 v{sq[rt]}, 0, v{sq[rt]}")
            e(f"v_add_f32 v{sq[rt]}, {f32hex(EPS)}, v{sq[rt]}")
            e(f"v_rsq_f32 v{sq[rt]}, v{sq[rt]}")
        e("s_lshl_b32 s27, s26, 7")
        e(f"v_lshl_add_u32 v{t[0]}, v{vn}, 2, s27")
        e(f"ds_write_b32 v{t[0]}, v{cs[0]}")
        e(f"ds_write_b32 v{t[0]}, v{cs[1]} offset:64")

    vm_qk = VM(); vm_qk.ops = list(vm.ops)
    e(f"v_add_u32 v{t[1]}, 16, v{vn}")
    x_addr([vn, t[1]])
    e("s_lshr_b32 s35, s30, 5")
    e("s_lshl_b32 s35, s35, 10")
    e("s_lshl_b32 s36, s30, 3")
    e("s_add_u32 s36, s36, 65536")
    e("s_mov_b32 s37, 81920")
    e("s_mov_b32 s38, 0")
    e("s_cmp_eq_u32 s33, 1")
    e("s_cselect_b32 s37, 163840, s37")
    e(f"s_cselect_b32 s38, {WS_KV}, s38")
    e("s_add_u32 s35, s35, s38")
    e("s_add_u32 s36, s36, s38")
    e(f"v_lshl_add_u32 v{t[4]}, v{vn}, 4, s35")
    e(f"v_lshl_add_u32 v{t[5]}, v{vn}, 3, s36")
    e("s_lshl_b32 s27, s34, 5")
    e("s_lshl_b32 s28, s26, 1")
    for i in range(8):
        e(f"s_xor_b32 s29, s28, {i}")
        e("s_lshl_b32 s29, s29, 2")
        e("s_add_u32 s29, s29, s27")
        e(f"v_add_u32 v{t[0]}, s29, v{vg}")
        e(f"v_mul_u32_u24 v{t[1]}, 205, v{t[0]}")
        e(f"v_lshrrev_b32 v{t[1]}, 10, v{t[1]}")
        e(f"v_mul_u32_u24 v{t[2]}, 5, v{t[1]}")
        e(f"v_sub_u32 v{t[0]}, v{t[0]}, v{t[2]}")
        e(f"v_mul_lo_u32 v{t[1]}, v{t[1]}, s37")
        e(f"v_lshrrev_b32 v{t[2]}, 1, v{t[0]}")
        e(f"v_lshl_add_u32 v{t[2]}, v{t[2]}, 9, v{t[4]}")
        e(f"v_and_b32 v{t[3]}, 1, v{t[0]}")
        e(f"v_lshl_add_u32 v{t[2]}, v{t[3]}, 3, v{t[2]}")
        e(f"v_cmp_eq_u32 vcc, 4, v{t[0]}")
        e(f"v_mov_b32 v{t[3]}, 256")
        e(f"v_mov_b32 v{t[6]}, 128")
        e(f"v_cndmask_b32 v{t[2]}, v{t[2]}, v{t[5]}, vcc")
        e(f"v_cndmask_b32 v{t[3]}, v{t[3]}, v{t[6]}, vcc")
        e(f"v_add_u32 v{vst[0][i]}, v{t[1]}, v{t[2]}")
        e(f"v_add_u32 v{vst[1][i]}, v{vst[0][i]}, v{t[3]}")
    main_loop(False, vm_qk)
    stats_common()
    e(f"s_mov_b32 s27, {f32hex(QSCALE)}")
    e("s_cmp_eq_u32 s33, 0")
    e("s_cselect_b32 s27, s27, 1.0")
    for rt in range(2): e(f"v_mul_f32 v{sq[rt]}, s27, v{sq[rt]}")
    e("s_waitcnt lgkmcnt(0)")
    e("s_barrier")
    e("s_lshl_b32 s27, s26, 7")
    e(f"v_lshl_add_u32 v{t[0]}, v{vg}, 4, s27")
    for i in range(8):
        e(f"v_xor_b32 v{t[1]}, {i*64}, v{t[0]}")
        e(f"ds_read_b128 {vr(wf+4*i,4)}, v{t[1]}")
    for i in range(8):
        e(f"s_waitcnt lgkmcnt({7-i})")
        for rt in range(2):
            a = ACC(rt, i)
            for j in range(4):
                e(f"v_fma_f32 v{a+j}, -v{sx[rt]}, v{wf+4*i+j}, v{a+j}")
            for j in range(4):
                e(f"v_mul_f32 v{a+j}, v{sq[rt]}, v{a+j}")
            e(f"v_cvt_pk_bf16_f32 v{a}, v{a}, v{a+1}")
            e(f"v_cvt_pk_bf16_f32 v{a+1}, v{a+2}, v{a+3}")
            e(f"buffer_store_dwordx2 {vr(a,2)}, v{vst[rt][i]}, s[20:23], 0 offen")
    k.stamp(8)
    k.dump_stamps(9, 0, 26, 8, 4)
    e("s_endpgm")

    k.label("L_p1_vpath")
    vm_v = VM(); vm_v.ops = list(vm.ops)
    vrow = vst[1][0]
    e(f"v_lshrrev_b32 v{t[0]}, 2, v{vn}")
    e(f"v_and_b32 v{t[1]}, 3, v{vn}")
    e(f"v_lshl_add_u32 v{vrow}, v{t[0]}, 3, v{t[1]}")
    e(f"v_add_u32 v{t[1]}, 4, v{vrow}")
    x_addr([vrow, t[1]])
    e("s_lshr_b32 s35, s30, 4")
    e("s_mul_i32 s35, s35, 640")
    e(f"s_add_u32 s35, s35, {WS_KV + 81920}")
    e(f"v_mul_u32_u24 v{t[4]}, 320, v{vg}")
    e(f"v_add_u32 v{t[4]}, s35, v{t[4]}")
    e("s_mov_b32 s37, 163840")
    e("s_lshl_b32 s27, s34, 7")
    e("s_lshl_b32 s28, s26, 1")
    for i in range(8):
        e(f"s_xor_b32 s29, s28, {i}")
        e("s_lshl_b32 s29, s29, 4")
        e("s_add_u32 s29, s29, s27")
        e(f"v_add_u32 v{t[0]}, s29, v{vn}")
        e(f"v_mul_u32_u24 v{t[1]}, 3277, v{t[0]}")
        e(f"v_lshrrev_b32 v{t[1]}, 16, v{t[1]}")
        e(f"v_mul_u32_u24 v{t[2]}, 20, v{t[1]}")
        e(f"v_sub_u32 v{t[0]}, v{t[0]}, v{t[2]}")
        e(f"v_mul_lo_u32 v{t[1]}, v{t[1]}, s37")
        e(f"v_lshl_add_u32 v{t[0]}, v{t[0]}, 4, v{t[4]}")
        e(f"v_add_u32 v{vst[0][i]}, v{t[0]}, v{t[1]}")
    main_loop(True, vm_v)
    stats_common()
    e("s_lshl_b32 s27, s26, 7")
    e(f"v_lshl_add_u32 v{t[1]}, v{vrow}, 2, s27")
    for rt in range(2):
        e(f"ds_write_b32 v{t[1]}, v{sx[rt]} offset:{1024 + rt*16}")
        e(f"ds_write_b32 v{t[1]}, v{sq[rt]} offset:{2048 + rt*16}")
    e("s_waitcnt lgkmcnt(0)")
    e("s_barrier")
    e(f"v_lshl_add_u32 v{t[1]}, v{vg}, 5, s27")
    mq = [wf, wf + 4]; rq = [wf + 8, wf + 12]; cv = wf + 16
    for rt in range(2):
        e(f"ds_read_b128 {vr(mq[rt],4)}, v{t[1]} offset:{1024 + rt*16}")
        e(f"ds_read_b128 {vr(rq[rt],4)}, v{t[1]} offset:{2048 + rt*16}")
    for i in range(8):
        e(f"v_xor_b32 v{t[2]}, {i*64}, v{t[0]}")
        e(f"ds_read_b32 v{cv+i}, v{t[2]}")
    for i in range(8):
        e(f"s_waitcnt lgkmcnt({7-i})")
        a0 = ACC(0, i)
        for rt in range(2):
            a = ACC(rt, i)
            for j in range(4):
                e(f"v_fma_f32 v{a+j}, -v{mq[rt]+j}, v{cv+i}, v{a+j}")
            for j in range(4):
                e(f"v_mul_f32 v{a+j}, v{rq[rt]+j}, v{a+j}")
        for j in range(4):
            e(f"v_cvt_pk_bf16_f32 v{a0+j}, v{a0+2*j}, v{a0+2*j+1}")
        e(f"buffer_store_dwordx4 {vr(a0,4)}, v{vst[0][i]}, s[20:23], 0 offen")
    k.stamp(8)
    k.dump_stamps(9, 0, 26, 8, 4)
    k.label("L_p1_end")
    e("s_endpgm")
    return k
```

```python
from asmlib import *
from layout import *
from p1 import srd, reduce_g, VM

def gen_p2():
    k = Kern("p2", 256, 512, 163840)
    e = k.e
    va = VAlloc(1)
    vlane = va.get(); vl16 = va.get(); vidx = va.get()
    vak1 = va.get(); vak2 = va.get(); vav = va.get()
    vmx = [va.get(), va.get()]
    t = [va.get() for _ in range(12)]
    vso = [va.get() for _ in range(3)]
    q1 = [va.get(4, 4), va.get(4, 4)]
    q2 = [va.get(2, 2), va.get(2, 2)]
    k1 = [va.get(4, 4), va.get(4, 4)]
    k2 = [va.get(2, 2), va.get(2, 2)]
    vv = [[va.get(4, 4), va.get(4, 4)] for _ in range(2)]
    Sb = [va.get(16, 4) for _ in range(4)]
    O = [va.get(16, 4) for _ in range(2)]
    sj = va.get(32, 4)
    so = va.get(32, 4)
    vsj = va.get(); vsd = va.get(); vsel0 = va.get(); vsel1 = va.get(); vones = va.get()
    k.nv = va.n; k.ns = 64
    assert k.nv <= 256, k.nv
    e("s_cmp_ge_u32 s2, 256")
    e("s_cbranch_scc1 L_p2_end")
    k.rstamp(0); k.stamp(1)
    e(f"s_load_dwordx2 s[8:9], s[0:1], {KA['ws']}")
    e(f"s_load_dwordx2 s[4:5], s[0:1], {KA['wo']}")
    e(f"s_load_dwordx8 s[44:51], s[0:1], {KA['w1']}")
    e(f"v_lshrrev_b32 v{t[0]}, 6, v0")
    e(f"v_and_b32 v{vlane}, 63, v0")
    e(f"v_readfirstlane_b32 s26, v{t[0]}")
    e(f"v_lshlrev_b32 v{vl16}, 4, v{vlane}")
    e("s_and_b32 s30, s2, 7")
    e("s_lshr_b32 s31, s2, 3")
    e("s_and_b32 s24, s31, 3")
    e("s_lshl_b32 s30, s30, 2")
    e("s_add_u32 s24, s24, s30")
    e("s_lshr_b32 s25, s31, 2")
    e("s_and_b32 s27, s26, 3")
    e("s_lshr_b32 s28, s26, 2")
    e("s_mov_b32 s29, 0")
    e("s_mov_b32 s40, 0x000fffff")
    e("s_mov_b32 s41, 0x000fffff")
    e("s_lshl_b32 s30, s27, 11")
    e("s_lshl_b32 s32, s28, 15")
    e("s_add_u32 s32, s32, s30")
    e("s_mul_i32 s36, s28, 40960")
    e("s_add_u32 s36, s36, 81920")
    e("s_add_u32 s33, s36, s30")
    e("s_lshl_b32 s30, s27, 10")
    e("s_add_u32 s36, s36, s30")
    e("s_add_u32 s36, s36, 6144")
    e("s_lshl_b32 s34, s28, 13")
    e("s_add_u32 s34, s34, s30")
    e("s_add_u32 s34, s34, 65536")
    e("s_mov_b32 s35, 10240")
    e("s_cmp_lt_u32 s27, 2")
    e("s_cselect_b32 s34, s34, s36")
    e("s_cselect_b32 s35, 2048, s35")
    e("s_lshl_b32 s30, s25, 3")
    e("s_lshl_b32 s31, s27, 1")
    e("s_add_u32 s30, s30, s31")
    e("s_add_u32 s37, s30, s28")
    e("s_xor_b32 s38, s37, 1")
    e(f"v_and_b32 v{t[0]}, 31, v{vlane}")
    e(f"v_lshrrev_b32 v{t[1]}, 5, v{vlane}")
    e(f"v_lshlrev_b32 v{t[1]}, 2, v{t[1]}")
    e(f"v_lshl_add_u32 v{t[2]}, v{t[0]}, 3, v{t[1]}")
    e("s_waitcnt lgkmcnt(0)")
    e("s_mul_i32 s30, s24, 163840")
    e(f"s_add_u32 s30, s30, {WS_KV}")
    e("s_add_u32 s12, s8, s30")
    e("s_addc_u32 s13, s9, 0")
    e("s_mov_b32 s14, 163840")
    e("s_mov_b32 s15, 0x20000")
    e("s_mul_i32 s30, s24, 81920")
    e("s_add_u32 s16, s8, s30")
    e("s_addc_u32 s17, s9, 0")
    e("s_mov_b32 s18, 81920")
    e("s_mov_b32 s19, 0x20000")
    srd(k, 20, 8, WS_END)
    k.label("L_p2_start")
    for a, sT in ((0, 37), (1, 38)):
        e(f"s_lshl_b32 s30, s{sT}, 10")
        e(f"buffer_load_dwordx4 {vr(q1[a],4)}, v{vl16}, s[16:19], s30 offen")
        e(f"s_lshl_b32 s30, s{sT}, 8")
        e("s_add_u32 s30, s30, 65536")
        e(f"buffer_load_dword v{q2[a]}, v{t[2]}, s[16:19], s30 offen")
    def dma(sreg, add):
        if add: e(f"s_add_u32 s30, s{sreg}, {add}")
        else: e(f"s_mov_b32 s30, s{sreg}")
        e("s_mov_b32 m0, s30")
        e("s_nop 0")
        e(f"buffer_load_dwordx4 v{vl16}, s[12:15], s30 offen lds")
        if sreg != 39:
            e(f"buffer_load_dwordx4 v{vl16}, s[12:15], s30 offen offset:1024 lds")
    e("s_mov_b32 s39, s34")
    for s_ in range(4):
        dma(32, s_ * 8192)
        dma(39, 0)
        dma(33, s_ * 10240)
        if s_ < 3: e("s_add_u32 s39, s39, s35")
    k.stamp(2)
    e("s_lshl_b32 s52, s2, 2")
    e("s_add_u32 s52, s52, s26")
    e("s_cmp_ge_u32 s26, 4")
    e("s_cselect_b32 s52, 1000, s52")
    e("s_mov_b32 s56, s4"); e("s_mov_b32 s57, s5")
    e(f"s_mov_b32 s53, {WP_WO}")
    e("s_mov_b32 s54, s52")
    e("s_mov_b32 s55, -1")
    e(f"s_mov_b32 s58, {D*D*2}")
    for lo, sp, dst, csb, nb in ((100, 44, WP_W1, 0, D*D*2), (200, 46, WP_W2, -1, D*D*2), (300, 48, WP_W3, 640, D*F*2), (540, 50, WP_W4, -1, D*F*2)):
        e(f"s_sub_u32 s30, s52, {lo}")
        e(f"s_cmp_ge_u32 s52, {lo}")
        e(f"s_cselect_b32 s56, s{sp}, s56")
        e(f"s_cselect_b32 s57, s{sp+1}, s57")
        e(f"s_cselect_b32 s53, {dst}, s53")
        e("s_cselect_b32 s54, s30, s54")
        e(f"s_cselect_b32 s55, {csb}, s55")
        e(f"s_cselect_b32 s58, {nb}, s58")
    e("s_mov_b32 s59, 0x20000")
    e("s_mov_b32 s60, 1280")
    e("s_mov_b32 s61, 13108")
    e("s_mov_b32 s42, 13108")
    e("s_cmp_eq_u32 s55, 640")
    e("s_cselect_b32 s60, 3072, s60")
    e("s_cselect_b32 s61, 5462, s61")
    e("s_cselect_b32 s62, 12, 5")
    e("s_cselect_b32 s63, 6, 5")
    e("s_cselect_b32 s42, 10923, s42")
    e("s_mul_i32 s30, s54, s61")
    e("s_lshr_b32 s30, s30, 16")
    e("s_mul_i32 s31, s30, s62")
    e("s_sub_u32 s31, s54, s31")
    e("s_cmp_ge_u32 s52, 540")
    e("s_cselect_b32 s43, 48, 20")
    e("s_mov_b32 s61, s30")
    e("s_mov_b32 s62, s31")
    e(f"v_and_b32 v{t[0]}, 15, v{vlane}")
    e(f"v_lshrrev_b32 v{t[1]}, 4, v{vlane}")
    e("s_lshl_b32 s30, s60, 2")
    e(f"v_mul_lo_u32 v{vsj}, v{t[1]}, s30")
    e(f"v_lshl_add_u32 v{vsj}, v{t[0]}, 4, v{vsj}")
    e("s_lshl_b32 s30, s62, 3")
    e(f"v_lshrrev_b32 v{t[3]}, 1, v{t[0]}")
    e(f"v_add_u32 v{t[3]}, s30, v{t[3]}")
    e(f"v_mul_lo_u32 v{t[4]}, v{t[3]}, s42")
    e(f"v_lshrrev_b32 v{t[4]}, 16, v{t[4]}")
    e(f"v_mul_lo_u32 v{t[5]}, v{t[4]}, s63")
    e(f"v_sub_u32 v{t[3]}, v{t[3]}, v{t[5]}")
    e(f"v_mul_lo_u32 v{t[4]}, v{t[4]}, s43")
    e(f"v_add_u32 v{t[4]}, s61, v{t[4]}")
    e(f"v_mul_lo_u32 v{t[4]}, v{t[4]}, s63")
    e(f"v_add_u32 v{t[3]}, v{t[3]}, v{t[4]}")
    e(f"v_lshlrev_b32 v{t[3]}, 10, v{t[3]}")
    e(f"v_and_b32 v{t[4]}, 1, v{t[0]}")
    e(f"v_lshlrev_b32 v{t[4]}, 7, v{t[4]}")
    e(f"v_lshl_add_u32 v{t[4]}, v{t[1]}, 8, v{t[4]}")
    e(f"v_add3_u32 v{vsd}, v{t[3]}, v{t[4]}, s53")
    e("s_cmp_ge_u32 s52, 780")
    e("s_cbranch_scc1 L_p2_nosj1")
    e("s_lshl_b32 s30, s61, 5")
    e("s_mul_i32 s30, s30, s60")
    e("s_lshl_b32 s31, s62, 8")
    e("s_add_u32 s30, s30, s31")
    for ee in range(8):
        e(f"buffer_load_dwordx4 {vr(sj+4*ee,4)}, v{vsj}, s[56:59], s30 offen")
        if ee == 3:
            e("s_mul_i32 s31, s60, 13"); e("s_add_u32 s30, s30, s31")
        elif ee < 7:
            e("s_add_u32 s30, s30, s60")
    k.label("L_p2_nosj1")
    e(f"v_mov_b32 v{vidx}, 0xdddddddd")
    e(f"v_mov_b32 v{vones}, 0x3f803f80")
    e(f"v_mov_b32 v{vsel0}, 0x05040100")
    e(f"v_mov_b32 v{vsel1}, 0x07060302")
    for b in range(2):
        e(f"v_mov_b32 v{k2[b]+1}, 0x3f803f80")
        e(f"v_mov_b32 v{q2[b]+1}, 0")
        e(f"v_mov_b32 v{vmx[b]}, 0xff800000")
        for u in range(2):
            for j in range(4): e(f"v_mov_b32 v{vv[b][u]+j}, 0x3f803f80")
        for j in range(16): e(f"v_mov_b32 v{O[b]+j}, 0")
    for j in range(16): e(f"v_mov_b32 v{Sb[3]+j}, 0")
    e(f"v_and_b32 v{t[0]}, 31, v{vlane}")
    e("s_lshl_b32 s30, s37, 5")
    e(f"v_add_u32 v{t[0]}, s30, v{t[0]}")
    e(f"v_lshrrev_b32 v{t[1]}, 4, v{t[0]}")
    e(f"v_mul_u32_u24 v{t[1]}, 20480, v{t[1]}")
    e(f"v_and_b32 v{t[0]}, 15, v{t[0]}")
    e(f"v_lshl_add_u32 v{t[0]}, v{t[0]}, 4, v{t[1]}")
    e(f"v_add_u32 v{t[0]}, {WS_O}, v{t[0]}")
    e(f"v_lshrrev_b32 v{t[1]}, 5, v{vlane}")
    e("s_mul_i32 s30, s24, 20")
    e(f"v_lshl_add_u32 v{t[1]}, v{t[1]}, 2, s30")
    for qd in range(3):
        e(f"v_add_u32 v{t[3]}, {8*qd}, v{t[1]}")
        e(f"v_lshrrev_b32 v{t[4]}, 5, v{t[3]}")
        e(f"v_lshl_add_u32 v{t[4]}, v{t[4]}, 10, v{t[0]}")
        e(f"v_bfe_u32 v{t[5]}, v{t[3]}, 2, 2")
        e(f"v_lshl_add_u32 v{t[4]}, v{t[5]}, 8, v{t[4]}")
        e(f"v_bfe_u32 v{t[5]}, v{t[3]}, 4, 1")
        e(f"v_lshl_add_u32 v{vso[qd]}, v{t[5]}, 3, v{t[4]}")
    e("s_waitcnt vmcnt(23)")
    e("s_cmp_ge_u32 s52, 780")
    e("s_cbranch_scc0 L_p2_w0")
    e("s_waitcnt vmcnt(15)")
    k.label("L_p2_w0")
    e("s_cmp_eq_u32 s29, 0")
    e("s_cbranch_scc1 L_p2_w1")
    e("s_waitcnt vmcnt(0)")
    k.label("L_p2_w1")
    e("s_barrier")
    k.stamp(3)
    e(f"v_mov_b32 v{vak1}, v{vl16}")
    e(f"v_add_u32 v{vak2}, 65536, v{t[2]}")
    e("s_mul_i32 s30, s29, 63")
    e("s_add_u32 s30, s30, 1")
    k.label("L_p2_scan")
    e(f"ds_read_b128 {vr(k1[0],4)}, v{vak1}")
    e(f"ds_read_b32 v{k2[0]}, v{vak2}")
    e(f"v_add_u32 v{vak1}, 1024, v{vak1}")
    e(f"v_add_u32 v{vak2}, 256, v{vak2}")
    e("s_waitcnt lgkmcnt(0)")
    for a in range(2):
        e(f"v_mfma_f32_32x32x16_bf16 {vr(Sb[a],16)}, {vr(k1[0],4)}, {vr(q1[a],4)}, 0")
        e(f"v_mfma_f32_32x32x8_bf16 {vr(Sb[a],16)}, {vr(k2[0],2)}, {vr(q2[a],2)}, {vr(Sb[a],16)}")
    e("s_nop 9")
    for a in range(2):
        if a == 1: e("s_nop 3")
        for j in range(8):
            e(f"v_max3_f32 v{vmx[a]}, v{Sb[a]+2*j}, v{Sb[a]+2*j+1}, v{vmx[a]}")
    e("s_sub_u32 s30, s30, 1")
    e("s_cmp_lg_u32 s30, 0")
    e("s_cbranch_scc1 L_p2_scan")
    e("s_lshl_b32 s30, s28, 15")
    e(f"v_add_u32 v{vak1}, s30, v{vl16}")
    e("s_lshl_b32 s30, s28, 13")
    e("s_add_u32 s30, s30, 65536")
    e(f"v_add_u32 v{vak2}, s30, v{t[2]}")
    e(f"ds_read_b128 {vr(k1[0],4)}, v{vak1}")
    e(f"ds_read_b32 v{k2[0]}, v{vak2}")
    e(f"v_and_b32 v{t[0]}, 31, v{vlane}")
    e(f"v_lshrrev_b32 v{t[1]}, 5, v{vlane}")
    e(f"v_mul_u32_u24 v{t[1]}, 320, v{t[1]}")
    e(f"v_lshl_add_u32 v{t[0]}, v{t[0]}, 4, v{t[1]}")
    e("s_mul_i32 s30, s28, 40960")
    e("s_add_u32 s30, s30, 81920")
    e(f"v_add_u32 v{vav}, s30, v{t[0]}")
    for a in range(2): e(f"v_mov_b32 v{t[3+a]}, v{vmx[a]}")
    e("s_nop 1")
    for a in range(2): e(f"v_permlane32_swap_b32 v{vmx[a]}, v{t[3+a]}")
    e("s_nop 1")
    e(f"v_cmp_gt_u32 vcc, 32, v{vlane}")
    for a in range(2):
        m = vmx[a]
        e(f"v_max_f32 v{m}, v{m}, v{t[3+a]}")
        e(f"v_sub_f32 v{m}, 0, v{m}")
        e(f"v_and_b32 v{t[5]}, 0xffff0000, v{m}")
        e(f"v_sub_f32 v{t[6]}, v{m}, v{t[5]}")
        e(f"v_and_b32 v{t[7]}, 0xffff0000, v{t[6]}")
        e(f"v_sub_f32 v{t[6]}, v{t[6]}, v{t[7]}")
        e(f"v_lshrrev_b32 v{t[6]}, 16, v{t[6]}")
        e(f"v_lshrrev_b32 v{t[5]}, 16, v{t[5]}")
        e(f"v_or_b32 v{t[5]}, v{t[5]}, v{t[7]}")
        e(f"v_cndmask_b32 v{q2[a]+1}, v{t[6]}, v{t[5]}, vcc")
    e("s_waitcnt lgkmcnt(0)")
    e("s_nop 1")
    def QK(i, tb):
        a = i % 2; s = Sb[i % 4]
        return [f"v_mfma_f32_32x32x16_bf16 {vr(s,16)}, {vr(k1[tb],4)}, {vr(q1[a],4)}, 0",
                f"v_mfma_f32_32x32x8_bf16 {vr(s,16)}, {vr(k2[tb],2)}, {vr(q2[a],2)}, {vr(s,16)}"]
    def PV(i, tb):
        a = i % 2; s = Sb[i % 4]
        return [f"v_smfmac_f32_32x32x32_bf16 {vr(O[a],16)}, {vr(vv[tb][0],4)}, {vr(s,8)}, v{vidx}",
                f"v_smfmac_f32_32x32x32_bf16 {vr(O[a],16)}, {vr(vv[tb][1],4)}, {vr(s+8,8)}, v{vidx}"]
    for x in QK(0, 0): e(x)
    e("s_nop 11")
    e("s_mov_b32 s31, 0")
    k.stamp(4)
    k.raw(".p2align 6")
    k.label("L_p2_loop")
    UN = 8
    for i in range(2 * UN):
        tl, a = divmod(i, 2)
        qk = QK(i + 1, ((i + 1) // 2) % 2)
        pv = PV(i - 1, ((i - 1) // 2) % 2)
        ins = {0: [qk[0]], 4: [qk[1]], 8: [pv[0]], 12: [pv[1]]}
        if a == 1:
            ins[0] = ["s_waitcnt lgkmcnt(0)"] + ins[0]
        else:
            rd = []
            if tl == UN - 1:
                rd += ["s_cmp_lg_u32 s31, 0", "s_cbranch_scc1 L_p2_nobar", "s_waitcnt vmcnt(0)", "s_barrier", "SIDEJOB", "L_p2_nobar:"]
            rd += [f"ds_read_b128 {vr(k1[(tl+1)%2],4)}, v{vak1} offset:{(tl+1)*1024}",
                   f"ds_read_b32 v{k2[(tl+1)%2]}, v{vak2} offset:{(tl+1)*256}"]
            ins[1] = rd
            ins[2] = ["s_mov_b64 exec, s[40:41]",
                      f"ds_read_b128 {vr(vv[tl%2][0],4)}, v{vav} offset:{tl*1280}",
                      f"ds_read_b128 {vr(vv[tl%2][1],4)}, v{vav} offset:{tl*1280+640}",
                      "s_mov_b64 exec, -1"]
            if tl == UN - 1:
                ins[6] = [f"v_add_u32 v{vak1}, {UN*1024}, v{vak1}", f"v_add_u32 v{vak2}, {UN*256}, v{vak2}", f"v_add_u32 v{vav}, {UN*1280}, v{vav}"]
        s = Sb[i % 4]
        for j in range(16):
            for x in ins.get(j, []):
                if x == "SIDEJOB":
                    e("s_cmp_lt_u32 s52, 780")
                    e("s_cbranch_scc1 L_p2_sidejob")
                    k.label("L_p2_sjret")
                elif x.endswith(":"): k.label(x[:-1])
                else: e(x)
            e(f"v_exp_f32 v{s+j}, v{s+j}")
    e("s_add_u32 s31, s31, 1")
    e(f"s_cmp_lt_u32 s31, {32//UN}")
    e("s_cbranch_scc1 L_p2_loop")
    k.stamp(5)
    e("s_nop 0")
    for x in PV(2 * UN - 1, (UN - 1) % 2): e(x)
    e("s_waitcnt lgkmcnt(0)")
    e("s_barrier")
    e("s_mul_i32 s30, s26, 3072")
    e(f"v_add_u32 v{t[0]}, s30, v{vl16}")
    e("s_xor_b32 s31, s26, 4")
    e("s_mul_i32 s31, s31, 3072")
    e(f"v_add_u32 v{t[1]}, s31, v{vl16}")
    e("s_nop 7")
    for j in range(3): e(f"ds_write_b128 v{t[0]}, {vr(O[1]+4*j,4)} offset:{j*1024}")
    e("s_waitcnt lgkmcnt(0)")
    e("s_barrier")
    for j in range(3): e(f"ds_read_b128 {vr(Sb[0]+4*j,4)}, v{t[1]} offset:{j*1024}")
    e("s_waitcnt lgkmcnt(0)")
    o = O[0]
    for j in range(12): e(f"v_add_f32 v{o+j}, v{o+j}, v{Sb[0]+j}")
    e(f"v_mov_b32 v{t[3]}, v{o+8}")
    e(f"v_mov_b32 v{t[4]}, v{o+8}")
    e(f"v_mov_b32 v{t[5]}, 0")
    e("s_nop 0")
    e(f"v_permlane32_swap_b32 v{t[3]}, v{t[4]}")
    for j in range(12): e(f"v_fma_f32 v{t[5]}, v{o+j}, 0, v{t[5]}")
    e(f"v_rcp_f32 v{t[3]}, v{t[4]}")
    e(f"v_add_f32 v{t[5]}, v{t[5]}, v{t[4]}")
    for j in range(12): e(f"v_mul_f32 v{o+j}, v{o+j}, v{t[3]}")
    for j in range(6): e(f"v_cvt_pk_bf16_f32 v{o+j}, v{o+2*j}, v{o+2*j+1}")
    e(f"buffer_store_dwordx2 {vr(o,2)}, v{vso[0]}, s[20:23], 0 offen")
    e(f"buffer_store_dwordx2 {vr(o+2,2)}, v{vso[1]}, s[20:23], 0 offen")
    e("s_mov_b32 exec_hi, 0")
    e(f"buffer_store_dwordx2 {vr(o+4,2)}, v{vso[2]}, s[20:23], 0 offen")
    e("s_mov_b64 exec, -1")
    e(f"v_cmp_nle_f32 vcc, {f32hex(2.0**-40)}, v{t[5]}")
    e(f"v_mov_b32 v{t[6]}, {f32hex(2.0**40)}")
    e(f"v_cmp_nge_f32 s[30:31], v{t[6]}, v{t[5]}")
    e("s_nop 1")
    e("s_or_b64 s[30:31], s[30:31], vcc")
    e("s_cmp_lg_u64 s[30:31], 0")
    e("s_cselect_b32 s30, 1, 0")
    e(f"v_mov_b32 v{t[6]}, s30")
    e("s_lshl_b32 s31, s26, 2")
    e(f"v_mov_b32 v{t[7]}, s31")
    e(f"ds_write_b32 v{t[7]}, v{t[6]} offset:32768")
    e("s_waitcnt lgkmcnt(0)")
    e("s_barrier")
    e(f"v_and_b32 v{t[7]}, 7, v{vlane}")
    e(f"v_lshlrev_b32 v{t[7]}, 2, v{t[7]}")
    e(f"ds_read_b32 v{t[6]}, v{t[7]} offset:32768")
    e("s_waitcnt lgkmcnt(0)")
    e(f"v_cmp_ne_u32 vcc, 0, v{t[6]}")
    e("s_nop 1")
    e("s_cmp_eq_u64 vcc, 0")
    e("s_cbranch_scc1 L_p2_done")
    e("s_cmp_lg_u32 s29, 0")
    e("s_cbranch_scc1 L_p2_done")
    e("s_mov_b32 s29, 1")
    e("s_waitcnt vmcnt(0)")
    e("s_barrier")
    e("s_branch L_p2_start")
    k.label("L_p2_done")
    k.stamp(6)
    k.dump_stamps(7, 1, 26, 8, 8)
    k.label("L_p2_end")
    e("s_endpgm")
    k.label("L_p2_sidejob")
    for j in range(8):
        for p in range(4):
            sel = vsel1 if j & 1 else vsel0
            e(f"v_perm_b32 v{so+4*j+p}, v{sj+4*(2*p+1)+j//2}, v{sj+4*(2*p)+j//2}, v{sel}")
        e(f"buffer_store_dwordx4 {vr(so+4*j,4)}, v{vsd}, s[20:23], 0 offen offset:{j*16}")
    e("s_cmp_eq_u32 s55, -1")
    e("s_cbranch_scc1 L_p2_sjret")
    cacc = sj
    for p in range(4):
        for j in range(8):
            c = "0" if p == 0 else f"v{cacc+j}"
            e(f"v_dot2_f32_bf16 v{cacc+j}, v{so+4*j+p}, v{vones}, {c}")
    e("s_nop 2")
    reduce_g(k, [cacc + j for j in range(8)], [cacc + 8 + j for j in range(8)])
    e("s_mul_i32 s30, s61, 2176")
    e("s_add_u32 s30, s30, s55")
    e("s_lshl_b32 s36, s62, 7")
    e("s_add_u32 s30, s30, s36")
    e("s_lshl_b32 s30, s30, 2")
    e(f"s_add_u32 s30, s30, {WS_CSP}")
    e(f"v_lshlrev_b32 v{cacc+8}, 5, v{vlane}")
    e("s_mov_b64 exec, 0xffff")
    e(f"buffer_store_dwordx4 {vr(cacc,4)}, v{cacc+8}, s[20:23], s30 offen")
    e(f"buffer_store_dwordx4 {vr(cacc+4,4)}, v{cacc+8}, s[20:23], s30 offen offset:16")
    e("s_mov_b64 exec, -1")
    e("s_branch L_p2_sjret")
    return k
```

```python
from asmlib import *
from layout import *
from p1 import srd, reduce_g, VM
import math
GA = -2.0 * math.log2(math.e) * math.sqrt(2.0 / math.pi)
GB = GA * 0.044715

def gen_gemm(name, kidx, RT, NT, KS, xoff, wbase, kind, DEPTH=3, LA=4):
    CK = 4
    NCH = KS // CK
    SLOT = CK * NT * 1024
    R = min(NCH, 163840 // SLOT)
    lds = R * SLOT
    if NCH > R: assert DEPTH <= R - 2
    k = Kern(name, 256, 256, lds)
    e = k.e
    va = VAlloc(1)
    vlane = va.get(); vl16 = va.get(); vg = va.get(); vn = va.get()
    vla = [vl16] + [va.get() for _ in range((lds - 1) // 65536)]
    vx = [va.get() for _ in range(4)] if kind == "p5" else [vl16]
    t = [va.get() for _ in range(10)]
    vga = va.get(); vgb = va.get()
    st = [va.get(4, 4) for _ in range(RT)]
    csr = va.get(4 * NT, 4) if kind in ("p4", "p6") else None
    res1 = va.get(2 * NT, 2) if kind in ("p3", "p5", "p7") else None
    res2 = va.get(2 * NT, 2) if kind == "p7" else None
    sjr = va.get(20) if kind == "p3" else None
    acc = va.get(4 * NT * RT, 4)
    NWF = LA + 1
    wf = va.get(4 * NWF, 4)
    XD = min(NCH, DEPTH + 1)
    xr = va.get(XD * CK * RT * 4, 4)
    k.nv = va.n; k.ns = 56
    assert k.nv <= 256, k.nv
    ACC = lambda rt, j: acc + (rt * NT + j) * 4
    XR = lambda ks, rt: xr + ((((ks // CK) % XD) * CK + ks % CK) * RT + rt) * 4
    WF = lambda f: wf + (f % NWF) * 4
    L = lambda s: f"L_{name}_{s}"
    e("s_cmp_ge_u32 s2, 256")
    e(f"s_cbranch_scc1 {L('end')}")
    k.rstamp(0); k.stamp(1)
    e(f"s_load_dwordx2 s[8:9], s[0:1], {KA['ws']}")
    if kind == "p3": e(f"s_load_dwordx2 s[4:5], s[0:1], {KA['x']}")
    if kind == "p7": e(f"s_load_dwordx2 s[4:5], s[0:1], {KA['out']}")
    e(f"v_lshrrev_b32 v{t[0]}, 6, v0")
    e(f"v_and_b32 v{vlane}, 63, v0")
    e(f"v_readfirstlane_b32 s26, v{t[0]}")
    e(f"v_lshlrev_b32 v{vl16}, 4, v{vlane}")
    e(f"v_lshrrev_b32 v{vg}, 4, v{vlane}")
    e(f"v_and_b32 v{vn}, 15, v{vlane}")
    e("s_and_b32 s27, s2, 7")
    e("s_lshr_b32 s28, s2, 3")
    if RT == 1:
        e("s_lshr_b32 s25, s2, 5")
        e("s_and_b32 s28, s28, 3")
        e("s_lshl_b32 s27, s27, 2")
        e("s_add_u32 s27, s27, s28")
        e("s_lshl_b32 s27, s27, 2")
        e("s_add_u32 s24, s27, s26")
    else:
        e("s_lshr_b32 s25, s2, 4")
        e("s_and_b32 s28, s28, 1")
        e("s_lshl_b32 s27, s27, 1")
        e("s_add_u32 s27, s27, s28")
        e("s_lshl_b32 s27, s27, 2")
        e("s_add_u32 s27, s27, s26")
        e("s_lshl_b32 s24, s27, 1")
    e(f"s_mul_i32 s29, s24, {KS*1024}")
    e(f"s_mul_i32 s30, s25, {KS*NT*1024}")
    e(f"s_mul_i32 s31, s26, {NT*1024}")
    e("s_add_u32 s30, s30, s31")
    if kind == "p5":
        e("s_lshl_b32 s27, s24, 4")
        for q, sh in enumerate((1, -1, 2, -2)):
            e(f"v_add_u32 v{t[0]}, s27, v{vn}")
            e(f"v_subrev_u32 v{t[0]}, {sh}, v{t[0]}")
            e(f"v_ashrrev_i32 v{t[1]}, 4, v{t[0]}")
            e(f"v_mul_i32_i24 v{t[1]}, {KS*1024}, v{t[1]}")
            e(f"v_and_b32 v{t[2]}, 15, v{t[0]}")
            e(f"v_lshl_add_u32 v{t[1]}, v{t[2]}, 4, v{t[1]}")
            e(f"v_lshl_add_u32 v{t[1]}, v{vg}, 8, v{t[1]}")
            e(f"v_cmp_gt_i32 vcc, 0, v{t[0]}")
            e(f"v_mov_b32 v{t[2]}, 0x40000000")
            e("s_nop 0")
            e(f"v_cndmask_b32 v{vx[q]}, v{t[1]}, v{t[2]}, vcc")
    e("s_waitcnt lgkmcnt(0)")
    srd(k, 12, 8, S * KS * 64, xoff)
    srd(k, 16, 8, KS * 32 * (D if NT == 5 else F) * 2, wbase)
    srd(k, 20, 8, WS_END)
    if kind in ("p3", "p7"): srd(k, 36, 4, S * D * 2)
    vm = VM()
    def loads(c):
        ops = []
        slot = (c % R) * SLOT
        for j in range(NT):
            pre = []
            if j % 4 == 0:
                pre = [f"s_add_u32 m0, s31, {slot + j*1024}", f"s_add_u32 s32, s30, {c*SLOT + j*1024}"]
            ops.append(pre + [f"buffer_load_dwordx4 v{vl16}, s[16:19], s32 offen offset:{(j%4)*1024} lds", ("w", c)])
        for rt in range(RT):
            for kk in range(CK):
                ks = c * CK + kk
                pre = []
                if kind == "p5":
                    if kk == 0: pre = [f"s_mov_b32 s33, {c*CK*1024}"]
                    ops.append(pre + [f"buffer_load_dwordx4 {vr(XR(ks,rt),4)}, v{vx[ks//5]}, s[12:15], s33 offen offset:{kk*1024}", ("x", c)])
                else:
                    if kk == 0: pre = [f"s_add_u32 s33, s29, {rt*KS*1024 + c*CK*1024}"]
                    ops.append(pre + [f"buffer_load_dwordx4 {vr(XR(ks,rt),4)}, v{vl16}, s[12:15], s33 offen offset:{kk*1024}", ("x", c)])
        return ops
    def emit_load(op):
        for s in op[:-1]: e(s)
        vm.issue(op[-1])
    for c in range(min(DEPTH, NCH)):
        for op in loads(c): emit_load(op)
    k.stamp(2)
    for i in range(1, len(vla)): e(f"v_add_u32 v{vla[i]}, {i*65536}, v{vl16}")
    if NT == 5:
        e("s_mul_i32 s27, s25, 5")
        e("s_mul_i32 s28, s24, 20480")
        for j in range(5):
            e(f"s_add_u32 s34, s27, {j}")
            e("s_lshr_b32 s35, s34, 1")
            e("s_lshl_b32 s35, s35, 10")
            e("s_and_b32 s34, s34, 1")
            e("s_lshl_b32 s34, s34, 3")
            e("s_add_u32 s35, s35, s34")
            e(f"s_add_u32 s{40+j}, s35, s28")
    def eload(s):
        e(s); vm.issue(("e", -1))
    if kind in ("p4", "p5", "p6"):
        stb = WS_ST2 if kind == "p6" else WS_ST1
        e("s_lshl_b32 s27, s24, 10")
        e(f"s_add_u32 s27, s27, {stb}")
        for rt in range(RT):
            eload(f"buffer_load_dwordx4 {vr(st[rt],4)}, v{vl16}, s[20:23], s27 offen offset:{rt*1024}")
    if kind in ("p4", "p6"):
        e(f"s_mul_i32 s27, s25, {NT*64}")
        e(f"s_add_u32 s27, s27, {WS_CS + (2560 if kind == 'p6' else 0)}")
        e(f"v_lshlrev_b32 v{t[0]}, 4, v{vg}")
        for j in range(NT):
            eload(f"buffer_load_dwordx4 {vr(csr+4*j,4)}, v{t[0]}, s[20:23], s27 offen offset:{j*64}")
    if kind in ("p3", "p7"):
        e("s_lshl_b32 s27, s24, 4")
        e(f"v_add_u32 v{vga}, s27, v{vn}")
        e(f"v_mul_u32_u24 v{vga}, 1280, v{vga}")
        e(f"v_lshl_add_u32 v{vga}, v{vg}, 3, v{vga}")
        e("s_mul_i32 s46, s25, 160")
    if kind == "p3":
        for j in range(NT):
            eload(f"buffer_load_dwordx2 {vr(res1+2*j,2)}, v{vga}, s[36:39], s46 offen offset:{j*32}")
    if kind in ("p5", "p7"):
        e(f"v_add_u32 v{t[0]}, {WS_H}, v{vl16}")
        for j in range(NT):
            eload(f"buffer_load_dwordx2 {vr(res1+2*j,2)}, v{t[0]}, s[20:23], s{40+j} offen")
    if kind == "p7":
        e(f"v_add_u32 v{t[1]}, {WS_X1}, v{vl16}")
        for j in range(NT):
            eload(f"buffer_load_dwordx2 {vr(res2+2*j,2)}, v{t[1]}, s[20:23], s{40+j} offen")
    nfr = KS * NT
    lg = VM()
    def rd(f):
        ks, j = divmod(f, NT)
        c, kk = divmod(ks, CK)
        if kk == 0 and j == 0:
            assert sum(1 for tg in vm.ops if tg == ("x", c)) == CK * RT
            n = vm.need(lambda tg: tg[0] != "e" and tg[1] <= c)
            e(f"s_waitcnt vmcnt({n})")
            e("s_barrier")
            if c == 0: k.stamp(3)
            if c == NCH - 1: k.stamp(4)
        sg, off = divmod((c % R) * SLOT + (kk * NT + j) * 1024, 65536)
        e(f"ds_read_b128 {vr(WF(f),4)}, v{vla[sg]} offset:{off}")
        lg.issue(("f", f))
    for f in range(LA): rd(f)
    for f in range(nfr):
        ks, j = divmod(f, NT)
        c, kk = divmod(ks, CK)
        n = lg.need(lambda tg: tg[1] <= f)
        e(f"s_waitcnt lgkmcnt({n})")
        for rt in range(RT):
            cc = "0" if ks == 0 else vr(ACC(rt, j), 4)
            e(f"v_mfma_f32_16x16x32_bf16 {vr(ACC(rt,j),4)}, {vr(WF(f),4)}, {vr(XR(ks,rt),4)}, {cc}")
        fi = kk * NT + j
        if c + DEPTH < NCH:
            ls = loads(c + DEPTH)
            if fi < len(ls): emit_load(ls[fi])
        if f + LA < nfr: rd(f + LA)
    k.stamp(5)
    e("s_waitcnt vmcnt(0)")
    def get_stats(rt, double):
        s_ = st[rt]
        e(f"v_add_f32 v{s_}, v{s_}, v{s_+2}")
        e(f"v_add_f32 v{s_+1}, v{s_+1}, v{s_+3}")
        reduce_g(k, [s_, s_ + 1], [s_ + 2, s_ + 3])
        e(f"v_mul_f32 v{s_}, {f32hex(1.0/D)}, v{s_}")
        e(f"v_mul_f32 v{s_+1}, {f32hex(1.0/D)}, v{s_+1}")
        e(f"v_fma_f32 v{s_+1}, -v{s_}, v{s_}, v{s_+1}")
        e(f"v_max_f32 v{s_+1}, 0, v{s_+1}")
        e(f"v_add_f32 v{s_+2}, {f32hex(EPS)}, v{s_+1}")
        e(f"v_rsq_f32 v{s_+2}, v{s_+2}")
        e("s_nop 0")
        if double:
            e(f"v_mul_f32 v{s_+3}, v{s_+2}, v{s_+2}")
            e(f"v_mul_f32 v{s_+3}, v{s_+3}, v{s_+1}")
            e(f"v_add_f32 v{s_+3}, {f32hex(EPS)}, v{s_+3}")
            e(f"v_rsq_f32 v{s_+3}, v{s_+3}")
            e("s_nop 0")
            e(f"v_mul_f32 v{s_+2}, v{s_+2}, v{s_+3}")
    def rnd_bf16(regs):
        for a in range(0, len(regs), 2):
            e(f"v_cvt_pk_bf16_f32 v{regs[a+1]}, v{regs[a]}, v{regs[a+1]}")
            e(f"v_lshlrev_b32 v{regs[a]}, 16, v{regs[a+1]}")
            e(f"v_and_b32 v{regs[a+1]}, 0xffff0000, v{regs[a+1]}")
    def unpack(src, dst):
        for a in range(2):
            e(f"v_lshlrev_b32 v{dst[2*a]}, 16, v{src+a}")
            e(f"v_and_b32 v{dst[2*a+1]}, 0xffff0000, v{src+a}")
    def gelu4(a):
        r = range(4)
        for j in r: e(f"v_mul_f32 v{t[j]}, v{a+j}, v{a+j}")
        for j in r: e(f"v_fma_f32 v{t[j]}, v{t[j]}, v{vgb}, v{vga}")
        for j in r: e(f"v_mul_f32 v{t[j]}, v{t[j]}, v{a+j}")
        for j in r: e(f"v_exp_f32 v{t[j]}, v{t[j]}")
        for j in r: e(f"v_add_f32 v{t[j]}, 1.0, v{t[j]}")
        for j in r: e(f"v_rcp_f32 v{t[j]}, v{t[j]}")
        for j in r: e(f"v_mul_f32 v{a+j}, v{a+j}, v{t[j]}")
    def put_stats(stb, ssum, ssq):
        reduce_g(k, [ssum, ssq], [t[0], t[1]])
        e("s_lshl_b32 s27, s24, 10")
        e("s_lshr_b32 s28, s25, 1")
        e("s_lshl_b32 s28, s28, 8")
        e("s_add_u32 s27, s27, s28")
        e("s_and_b32 s28, s25, 1")
        e("s_lshl_b32 s28, s28, 3")
        e("s_add_u32 s27, s27, s28")
        e(f"s_add_u32 s27, s27, {stb}")
        e("s_mov_b64 exec, 0xffff")
        e(f"buffer_store_dwordx2 {vr(ssum,2)}, v{vl16}, s[20:23], s27 offen")
        e("s_mov_b64 exec, -1")
    if kind in ("p4", "p6"):
        e(f"v_mov_b32 v{vga}, {f32hex(GA)}")
        e(f"v_mov_b32 v{vgb}, {f32hex(GB)}")
        for rt in range(RT): get_stats(rt, kind == "p4")
        if kind == "p4": e(f"v_add_u32 v{t[8]}, {WS_G}, v{vl16}")
        else:
            e(f"v_add_u32 v{t[8]}, {WS_U}, v{vl16}")
            e(f"s_mul_i32 s27, s24, {48*1024}")
            e("s_mul_i32 s28, s25, 3072")
            e("s_add_u32 s27, s27, s28")
            e(f"s_add_u32 s28, s27, {48*1024}")
        for rt in range(RT):
            for j in range(NT):
                a = ACC(rt, j)
                for q in range(4): e(f"v_fma_f32 v{a+q}, -v{st[rt]}, v{csr+4*j+q}, v{a+q}")
                for q in range(4): e(f"v_mul_f32 v{a+q}, v{a+q}, v{st[rt]+2}")
                gelu4(a)
                if kind == "p4":
                    e(f"v_cvt_pk_bf16_f32 v{a}, v{a}, v{a+1}")
                    e(f"v_cvt_pk_bf16_f32 v{a+1}, v{a+2}, v{a+3}")
                    e(f"buffer_store_dwordx2 {vr(a,2)}, v{t[8]}, s[20:23], s{40+j} offen")
                elif j % 2 == 1:
                    a0 = a - 4
                    for q in range(4): e(f"v_cvt_pk_bf16_f32 v{a0+q}, v{a0+2*q}, v{a0+2*q+1}")
                    e(f"buffer_store_dwordx4 {vr(a0,4)}, v{t[8]}, s[20:23], s{27+rt} offen offset:{(j//2)*1024}")
    else:
        ssum = st[0] if kind == "p3" else vga
        if kind == "p5":
            get_stats(0, False)
            e(f"v_mul_f32 v{st[0]+3}, v{st[0]}, v{st[0]+2}")
            ssum = wf
        if kind == "p3": e("s_nop 7")
        if kind == "p7": e("s_nop 7")
        ssq = ssum + 1
        if kind != "p7":
            e(f"v_mov_b32 v{ssum}, 0"); e(f"v_mov_b32 v{ssq}, 0")
            e(f"v_add_u32 v{t[8]}, {WS_H if kind == 'p3' else WS_X1}, v{vl16}")
        for j in range(NT):
            a = ACC(0, j); A = [a + q for q in range(4)]
            rnd_bf16(A)
            if kind == "p7":
                unpack(res2 + 2 * j, t[0:4])
                for q in range(4): e(f"v_add_f32 v{a+q}, v{a+q}, v{t[q]}")
                rnd_bf16(A)
            unpack(res1 + 2 * j, t[0:4])
            if kind == "p5":
                for q in range(4): e(f"v_fma_f32 v{t[q]}, v{t[q]}, v{st[0]+2}, -v{st[0]+3}")
                rnd_bf16(t[0:4])
            for q in range(4): e(f"v_add_f32 v{a+q}, v{a+q}, v{t[q]}")
            e(f"v_cvt_pk_bf16_f32 v{a}, v{a}, v{a+1}")
            e(f"v_cvt_pk_bf16_f32 v{a+1}, v{a+2}, v{a+3}")
            if kind == "p7":
                e(f"buffer_store_dwordx2 {vr(a,2)}, v{vga}, s[36:39], s46 offen offset:{j*32}")
            else:
                e(f"buffer_store_dwordx2 {vr(a,2)}, v{t[8]}, s[20:23], s{40+j} offen")
                unpack(a, t[0:4])
                for q in range(4):
                    e(f"v_add_f32 v{ssum}, v{ssum}, v{t[q]}")
                    e(f"v_fma_f32 v{ssq}, v{t[q]}, v{t[q]}, v{ssq}")
        if kind != "p7": put_stats(WS_ST1 if kind == "p3" else WS_ST2, ssum, ssq)
    if kind == "p3":
        e("s_cmp_ge_u32 s2, 34")
        e(f"s_cbranch_scc1 {L('nosj')}")
        e("s_cmp_lg_u32 s26, 0")
        e(f"s_cbranch_scc1 {L('nosj')}")
        e("s_lshl_b32 s27, s2, 8")
        e(f"v_lshl_add_u32 v{t[0]}, v{vlane}, 2, s27")
        for i in range(20):
            e(f"s_mov_b32 s28, {WS_CSP + i*2176*4}")
            e(f"buffer_load_dword v{sjr+i}, v{t[0]}, s[20:23], s28 offen")
        e("s_waitcnt vmcnt(0)")
        for i in range(1, 20): e(f"v_add_f32 v{sjr}, v{sjr}, v{sjr+i}")
        e(f"s_mov_b32 s28, {WS_CS}")
        e(f"buffer_store_dword v{sjr}, v{t[0]}, s[20:23], s28 offen")
        k.label(L('nosj'))
    k.stamp(6)
    k.dump_stamps(7, kidx, 26, 8, 4)
    k.label(L('end'))
    e("s_endpgm")
    return k

def gen_all():
    return [gen_gemm("p3", 2, 1, 5, 20, WS_O, WP_WO, "p3"),
            gen_gemm("p4", 3, 1, 5, 20, WS_H, WP_W1, "p4"),
            gen_gemm("p5", 4, 1, 5, 20, WS_G, WP_W2, "p5"),
            gen_gemm("p6", 5, 2, 6, 20, WS_X1, WP_W3, "p6"),
            gen_gemm("p7", 6, 1, 5, 48, WS_U, WP_W4, "p7", DEPTH=4)]
```

```python
import sys, importlib
sys.path.insert(0, "gen")
from asmlib import *
if '--prof' in sys.argv:
    Kern.PROFILE = True
    sys.argv.remove('--prof')
import p1
kernels = [p1.gen_p1()]
try:
    import p2
    kernels.append(p2.gen_p2())
    import pg
    kernels += pg.gen_all()
except ImportError as ex:
    print("partial build:", ex)
out = sys.argv[1] if len(sys.argv) > 1 else "out.s"
open(out, "w").write(assemble_file(kernels, "generated by gen/build.py (hand-written generator)"))
print("wrote", out, [ (k.name, k.nv, len(k.lines)) for k in kernels])
```
